```python
import torch

def _softmax(x, axis=-1):
    return torch.softmax(x, dim=axis)
def _gelu(x):
    return torch.nn.functional.gelu(x, approximate="tanh")
def _silu(x):
    return torch.nn.functional.silu(x)
def _sigmoid(x):
    return torch.sigmoid(x)
def _layernorm(x, axis=-1, eps=1e-5):
    m = x.mean(dim=axis, keepdim=True)
    v = x.var(dim=axis, keepdim=True, unbiased=False)
    return (x - m) / torch.sqrt(v + eps)
def _scatter_add(tgt, idx, src, axis=0):
    return tgt.clone().index_add_(axis, idx, src)
def _segment_sum(src, seg, n):
    out = torch.zeros((n,) + src.shape[1:], dtype=src.dtype)
    return out.index_add_(0, seg, src)
def _pad(x, pw):
    flat = tuple(v for pair in reversed(pw) for v in pair)
    return torch.nn.functional.pad(x, flat)

kernel_name = 'concat_heads__linear_kernel_hedgehog__ssm_conv_s4__prompt'

def setup_inputs():

    _w = (lambda a: (lambda t: t.to(torch.bfloat16) if t.is_floating_point() else t)(torch.as_tensor(a)))
    def _A_setup():
        B, S, D, H = 1, 2048, 448, 16
        Dh = D // H
        return {
            "x": _w((lambda *s: torch.randn(*s, dtype=torch.bfloat16) * 0.4)(B, S, D)),
            "wqkv": _w((lambda *s: torch.randn(*s, dtype=torch.bfloat16) * 0.4)(D, 3 * D)),
            "w_phi": _w((lambda *s: torch.randn(*s, dtype=torch.bfloat16) * 0.4)(H, Dh, Dh) * (Dh ** -0.5)),
            "wo": _w((lambda *s: torch.randn(*s, dtype=torch.bfloat16) * 0.05)(D, D)),
        }
    _A_in = _A_setup()

    def _B_setup():
        B, L, D, N = 1, 2048, 448, 256
        A_re = -(lambda _x: torch.exp(torch.as_tensor(_x)))((lambda *s: torch.randn(*s, dtype=torch.bfloat16) * 3.2)(D, N))
        A_im = torch.pi * (lambda *s: torch.randn(*s, dtype=torch.bfloat16) * 0.2)(D, N)
        B_re = (lambda *s: torch.randn(*s, dtype=torch.bfloat16) * 0.4)(D, N)
        B_im = (lambda *s: torch.randn(*s, dtype=torch.bfloat16) * 0.4)(D, N)
        C_re = (lambda *s: torch.randn(*s, dtype=torch.bfloat16) * 0.4)(D, N)
        C_im = (lambda *s: torch.randn(*s, dtype=torch.bfloat16) * 0.4)(D, N)
        log_dt = (lambda *s: torch.randn(*s, dtype=torch.bfloat16) * 0.2)(D) * 0.5 - 4.0
        Dskip = (lambda *s: torch.randn(*s, dtype=torch.bfloat16) * 0.4)(D)
        return {
            "u": _w((lambda *s: torch.randn(*s, dtype=torch.bfloat16) * 0.05)(B, L, D)),
            "A_re": _w(A_re),
            "A_im": _w(A_im),
            "B_re": _w(B_re),
            "B_im": _w(B_im),
            "C_re": _w(C_re),
            "C_im": _w(C_im),
            "log_dt": _w(log_dt),
            "Dskip": _w(Dskip),
        }
    _B_in = _B_setup()

    return {
        "A_x": _A_in["x"],
        "A_wqkv": _A_in["wqkv"],
        "A_w_phi": _A_in["w_phi"],
        "A_wo": _A_in["wo"],
        "B_u": _B_in["u"],
        "B_A_re": _B_in["A_re"],
        "B_A_im": _B_in["A_im"],
        "B_B_re": _B_in["B_re"],
        "B_B_im": _B_in["B_im"],
        "B_C_re": _B_in["C_re"],
        "B_C_im": _B_in["C_im"],
        "B_log_dt": _B_in["log_dt"],
        "B_Dskip": _B_in["Dskip"],
    }

def reference(A_x, A_wqkv, A_w_phi, A_wo, B_u, B_A_re, B_A_im, B_B_re, B_B_im, B_C_re, B_C_im, B_log_dt, B_Dskip):
    def _A_ref(x, wqkv, w_phi, wo):
        B, S, D = x.shape
        H = 16; Dh = D // H
        qkv = (lambda x, *d: x.permute(*d))((x @ wqkv).reshape(B, S, 3, H, Dh), 2, 0, 3, 1, 4)
        q, k, v = qkv[0], qkv[1], qkv[2]
        pq = torch.einsum("bhsd,hdf->bhsf", q, w_phi)
        pk = torch.einsum("bhsd,hdf->bhsf", k, w_phi)
        phi_q = torch.concatenate([_softmax(pq, axis=-1), _softmax(-pq, axis=-1)], axis=-1)
        phi_k = torch.concatenate([_softmax(pk, axis=-1), _softmax(-pk, axis=-1)], axis=-1)
        kv = torch.einsum("bhsf,bhsd->bhfd", phi_k, v)
        z  = torch.einsum("bhsf->bhf", phi_k)
        num = torch.einsum("bhqf,bhfd->bhqd", phi_q, kv)
        den = torch.einsum("bhqf,bhf->bhq", phi_q, z)[..., None] + 1e-6
        o = num / den
        return (lambda x, *d: x.permute(*d))(o, 0, 2, 1, 3).reshape(B, S, D) @ wo

    def _B_ref(u, A_re, A_im, B_re, B_im, C_re, C_im, log_dt, Dskip):
        Bsz, L, D = u.shape
        dt = torch.exp(log_dt)[:, None]
        A = A_re + 1j * A_im
        Bc = B_re + 1j * B_im
        Cc = C_re + 1j * C_im
        logdA = dt * A
        dB = dt * Bc
        l = (lambda x, dt: x.to(dt))(torch.arange(L), A_re.dtype)
        P = torch.exp(logdA[:, :, None] * l[None, None, :])
        K = torch.einsum("dn,dnl,dn->dl", Cc, P, dB).real
        L2 = 2 * L
        Kp = _pad(K, ((0, 0), (0, L)))
        up = (lambda x, *d: x.permute(*d))(u, 0, 2, 1)
        up = _pad(up, ((0, 0), (0, 0), (0, L)))
        Kf = (lambda x, axes=(-2,-1): torch.fft.rfft2(x.float(), dim=axes))(Kp[:, None, :], axes=(-2, -1))
        Uf = (lambda x, axes=(-2,-1): torch.fft.rfft2(x.float(), dim=axes))(up[:, :, None, :], axes=(-2, -1))
        Yf = Uf * Kf[None, :, :, :]
        y = (lambda x, s, axes=(-2,-1): torch.fft.irfft2(x, s=s, dim=axes).to(torch.bfloat16))(Yf, (1, L2), axes=(-2, -1))[:, :, 0, :L]
        y = (lambda x, *d: x.permute(*d))(y, 0, 2, 1) + u * Dskip[None, None, :]
        return y

    a = _A_ref(A_x, A_wqkv, A_w_phi, A_wo)
    b = _B_ref(B_u, B_A_re, B_A_im, B_B_re, B_B_im, B_C_re, B_C_im, B_log_dt, B_Dskip)
    return torch.concatenate([a, b], axis=-1)
```

```python
class Asm:
    def __init__(self):
        self.lines = []
        self.uid = 0
    def __call__(self, s):
        for l in s.split('\n'):
            l = l.strip()
            if l:
                self.lines.append(('' if l.endswith(':') else '    ') + l)
    def raw(self, s):
        self.lines.append(s)
    def label(self, base):
        self.uid += 1
        return f"{base}_{self.uid}"
    def text(self):
        return '\n'.join(self.lines) + '\n'

def kernel_begin(a, name):
    a.raw('.text')
    a.raw(f'.globl {name}')
    a.raw('.p2align 8')
    a.raw(f'.type {name},@function')
    a.raw(f'{name}:')

def kernel_desc(name, vgpr, sgpr=102, accum=None, wgy=False):
    if accum is None:
        accum = (vgpr + 3) // 4 * 4
    s = f""".p2align 6
.amdhsa_kernel {name}
  .amdhsa_next_free_vgpr {vgpr}
  .amdhsa_next_free_sgpr {sgpr}
  .amdhsa_accum_offset {accum}
  .amdhsa_group_segment_fixed_size 0
  .amdhsa_kernarg_size 128
  .amdhsa_user_sgpr_count 2
  .amdhsa_user_sgpr_kernarg_segment_ptr 1
  .amdhsa_system_sgpr_workgroup_id_x 1
"""
    if wgy:
        s += "  .amdhsa_system_sgpr_workgroup_id_y 1\n"
    s += ".end_amdhsa_kernel\n"
    return s

def srd(a, d, ptr, nbytes):
    a(f"s_mov_b32 s{d}, s{ptr}")
    a(f"s_mov_b32 s{d+1}, s{ptr+1}")
    a(f"s_mov_b32 s{d+2}, {nbytes}")
    a(f"s_mov_b32 s{d+3}, 0x00020000")
```

```python
from asmlib import *

PQ_OFF  = 0x000000
KVP_OFF = 0x200000
O_OFF   = 0x300000
KR_OFF  = 0x500000
KR_COPY = 4160
KR_CH   = 2 * KR_COPY
UT_OFF  = 0x900000
YT_OFF  = 0xB00000

KA_X, KA_WQKV, KA_WPHI, KA_WO, KA_U = 0, 8, 16, 24, 32
KA_ARE, KA_AIM, KA_BRE, KA_BIM, KA_CRE, KA_CIM = 40, 48, 56, 64, 72, 80
KA_LOGDT, KA_DSKIP, KA_OUT, KA_DBG, KA_WS = 88, 96, 104, 112, 120

def srd_off(a, d, ptr, off, nbytes):
    a(f"s_add_u32 s{d}, s{ptr}, {off}")
    a(f"s_addc_u32 s{d+1}, s{ptr+1}, 0")
    a(f"s_mov_b32 s{d+2}, {nbytes}")
    a(f"s_mov_b32 s{d+3}, 0x00020000")

def wave_lane(a, s_w, v_lane, tmp):
    a(f"v_lshrrev_b32 v{tmp}, 6, v0")
    a(f"v_and_b32 v{v_lane}, 63, v0")
    a(f"v_readfirstlane_b32 s{s_w}, v{tmp}")

def dma(a, voff, srd, soff, ldsaddr_s=None, ldsaddr_imm=None, tmp_s=None, extra=''):
    if ldsaddr_s is None:
        a(f"s_mov_b32 m0, {ldsaddr_imm}")
    elif not ldsaddr_imm:
        a(f"s_mov_b32 m0, s{ldsaddr_s}")
    else:
        a(f"s_add_u32 m0, s{ldsaddr_s}, {ldsaddr_imm}")
    a(f"buffer_load_dwordx4 v{voff}, s[{srd}:{srd+3}], {soff} offen lds{extra}")
```

```python
import re

TRANS = ('v_exp_f32', 'v_log_f32', 'v_rcp_f32', 'v_rsq_f32', 'v_sqrt_f32', 'v_sin_f32', 'v_cos_f32',
         'v_rcp_iflag_f32')

def regs_of(tok):
    tok = tok.strip()
    neg = tok.lstrip('-')
    if neg.startswith('|') and neg.endswith('|'):
        neg = neg[1:-1]
    if neg.startswith('neg(') or neg.startswith('abs('):
        neg = neg[4:-1]
    m = re.fullmatch(r'([vsa])(\d+)', neg)
    if m:
        return {(m.group(1), int(m.group(2)))}
    m = re.fullmatch(r'([vsa])\[(\d+):(\d+)\]', neg)
    if m:
        return {(m.group(1), i) for i in range(int(m.group(2)), int(m.group(3)) + 1)}
    if neg == 'vcc':
        return {('s', 'vcc')}
    if neg == 'm0':
        return {('s', 'm0')}
    if neg == 'exec':
        return {('s', 'exec')}
    return set()

class Ins:
    pass

def parse(line):
    s = line.split(';')[0].strip()
    if not s or s.endswith(':') or s.startswith('.'):
        return None
    parts = s.split(None, 1)
    op = parts[0]
    rest = parts[1] if len(parts) > 1 else ''
    ops = []
    depth = 0
    cur = ''
    for ch in rest:
        if ch in '[(':
            depth += 1
        if ch in '])':
            depth -= 1
        if ch == ',' and depth == 0:
            ops.append(cur.strip()); cur = ''
        else:
            cur += ch
    if cur.strip():
        ops.append(cur.strip())
    mods = ''
    if ops:
        last = ops[-1].split(None, 1)
        ops[-1] = last[0]
        mods = last[1] if len(last) > 1 else ''
    I = Ins()
    I.op = op; I.ops = ops; I.mods = mods
    base = re.sub(r'_(e32|e64|sdwa|dpp)$', '', op)
    I.base = base
    I.is_mfma = op.startswith('v_mfma')
    I.is_valu = op.startswith('v_') and not I.is_mfma
    I.is_salu = op.startswith('s_')
    I.is_vmem = op.startswith('buffer_') or op.startswith('global_')
    I.is_ds = op.startswith('ds_')
    I.is_trans = base in TRANS
    I.is_perm = base.startswith('v_permlane')
    I.is_dpp = ('row_' in mods or 'quad_perm' in mods or 'wave_' in mods or op.endswith('_dpp'))
    I.is_rfl = base in ('v_readfirstlane_b32', 'v_readlane_b32')
    I.opsel_res = False
    R = [regs_of(o) for o in ops]
    dst = set(); src = set()
    if I.is_mfma:
        dst = R[0]; I.A = R[1]; I.B = R[2]; I.C = R[3] if len(R) > 3 else set()
        src = I.A | I.B | I.C
        I.passes = 8 if '32x32' in op else 4
        I.ctok = ops[3]; I.dtok = ops[0]
    elif I.is_valu:
        if base.startswith('v_cmp'):
            dst = R[0]
            for r in R[1:]: src |= r
        elif I.is_perm:
            dst = R[0] | R[1]; src = R[0] | R[1]
        elif base == 'v_swap_b32':
            dst = R[0] | R[1]; src = R[0] | R[1]
        elif base in ('v_add_co_u32', 'v_addc_co_u32', 'v_sub_co_u32', 'v_mad_u64_u32'):
            dst = R[0] | R[1]
            for r in R[2:]: src |= r
        else:
            dst = R[0]
            for r in R[1:]: src |= r
            if base in ('v_fmac_f32', 'v_mac_f32', 'v_dot2c_f32_bf16', 'v_pk_fmac_f16', 'v_writelane_b32'):
                src |= R[0]
            if base == 'v_cndmask_b32' and len(ops) == 3:
                src |= {('s', 'vcc')}
            if 'op_sel' in mods and base.startswith('v_cvt'):
                I.opsel_res = True
            if op.endswith('_sdwa') and 'dst_sel' in mods and 'dst_sel:DWORD' not in mods:
                I.opsel_res = True
                src |= R[0]
    elif I.is_vmem:
        if 'lds' in mods.split() or (ops and ops[-1] == 'lds'):
            for r in R: src |= r
            src |= {('s', 'm0')}
            I.is_ldsdma = True
        elif '_load_' in op:
            dst = R[0]
            for r in R[1:]: src |= r
            if 'd16' in op: src |= R[0]
        else:
            for r in R: src |= r
    elif I.is_ds:
        if op.startswith('ds_read') or op.startswith('ds_bpermute') or op.startswith('ds_swizzle') or op.startswith('ds_permute'):
            dst = R[0]
            for r in R[1:]: src |= r
            if 'd16' in op: src |= R[0]
        else:
            for r in R: src |= r
    elif I.is_salu:
        if op.startswith('s_cmp') or op.startswith('s_cbranch') or op in ('s_waitcnt', 's_barrier', 's_nop', 's_endpgm', 's_branch', 's_setprio'):
            for r in R: src |= r
        else:
            if R:
                dst = R[0]
                for r in R[1:]: src |= r
            if 'saveexec' in op:
                dst = dst | {('s', 'exec')}
    I.dst = dst; I.src = src
    I.is_ldsdma = getattr(I, 'is_ldsdma', False)
    I.nstates = 1
    if op == 's_nop':
        I.nstates = int(ops[0], 0) + 1
    I.wide_store = I.is_vmem and '_store_' in op and ('x3' in op or 'x4' in op)
    if I.wide_store:
        I.store_data = R[0]
    return I

def isv(rs):
    return {r for r in rs if r[0] in 'va'}
def iss(rs):
    return {r for r in rs if r[0] == 's'}

def need(P, C):
    n = 0
    pv = isv(P.dst); ps = iss(P.dst)
    if P.is_valu:
        if pv:
            if C.is_mfma and (pv & C.src): n = max(n, 2)
            if C.is_perm and (pv & C.src): n = max(n, 2)
            if C.is_dpp and (pv & C.src): n = max(n, 2)
            if C.is_rfl and (pv & C.src): n = max(n, 1)
            if P.is_trans and C.is_valu and (pv & C.src): n = max(n, 1)
            if P.opsel_res and C.is_valu and (pv & (C.src | C.dst)): n = max(n, 1)
            if P.base.startswith('v_dot') and (C.is_valu or C.is_vmem or C.is_ds or C.is_mfma) and (pv & (C.src | C.dst)):
                same_acc = (C.base == P.base and len(C.ops) >= 4 and not (pv & (regs_of(C.ops[1]) | regs_of(C.ops[2]))))
                if not same_acc: n = max(n, 3)
        if ps:
            if C.is_valu and (ps & C.src): n = max(n, 2)
            if C.is_vmem and (ps & C.src): n = max(n, 5)
            if C.is_rfl and (ps & C.src): n = max(n, 4)
    if P.is_mfma:
        lat = 12 if P.passes == 8 else 8
        if C.is_mfma:
            if P.dst & (C.A | C.B): n = max(n, lat)
            if P.dst & C.C:
                if not (C.ctok == P.dtok and C.passes == P.passes): n = max(n, lat - 2)
            elif P.dst & C.dst:
                n = max(n, lat)
        elif (C.is_valu or C.is_vmem or C.is_ds) and (P.dst & (C.src | C.dst)):
            n = max(n, lat)
        if C.is_valu and (isv(P.C) & C.dst):
            n = max(n, 7 if P.passes == 8 else 3)
    if P.is_salu and (('s', 'm0') in P.dst) and (C.is_ldsdma or 'addtid' in C.op):
        n = max(n, 1)
    if P.wide_store and C.is_valu and (P.store_data & C.dst):
        n = max(n, 2)
    return n

def fix_hazards(lines, window=24):
    out = []
    hist = []
    inserted = 0
    for line in lines:
        I = parse(line)
        if I is None:
            s = line.strip()
            if s.endswith(':') and not s.startswith(';'):
                pass
            out.append(line)
            continue
        req = 0
        dist = 0
        for P in reversed(hist):
            nd = need(P, I)
            if nd > dist:
                req = max(req, nd - dist)
            dist += P.nstates
            if dist >= window:
                break
        while req > 0:
            k = min(req, 8)
            nl = f"    s_nop {k-1}"
            out.append(nl)
            hist.append(parse(nl))
            req -= k
            inserted += 1
        out.append(line)
        hist.append(I)
        if I.op in ('s_endpgm', 's_branch'):
            hist = []
        if len(hist) > 64:
            hist = hist[-40:]
    return out, inserted
```

```python
import sys, os
sys.path.insert(0, os.path.dirname(os.path.abspath(__file__)))
from gen_common import *
from haz import fix_hazards
import importlib

HEADER = open('concat_heads__linear_kernel_hedgehog__ssm_conv_s4__prompt.s.ref').read().split('; Override launch')[0]

def build_text(which, opts=None):
    opts = opts or {}
    a = Asm()
    launches = []
    descs = []
    for k in which:
        mod = importlib.import_module('gen_' + k)
        name = f"hh_{k}_kernel"
        info = getattr(mod, 'gen_' + k)(a, name, opts)
        launches.append(f"; @launch kernel={name} grid=({info['wgs']},1,1) block=({info.get('block',256)},1,1) lds={info['lds']}")
        descs.append(kernel_desc(name, info['vgpr'], accum=info.get('accum')))
    lines, n = fix_hazards(a.lines)
    txt = HEADER + '\n'.join(launches) + '\n.amdgcn_target "amdgcn-amd-amdhsa--gfx950"\n'
    txt += '\n'.join(lines) + '\n.section .rodata,"a"\n' + ''.join(descs)
    return txt, n

if __name__ == '__main__':
    out = sys.argv[1]
    which = sys.argv[2].split(',')
    opts = dict(kv.split('=') for kv in sys.argv[3:])
    txt, n = build_text(which, opts)
    open(out, 'w').write(txt)
    print(f"wrote {out}: {len(txt)} bytes, {n} s_nop inserted")
```

```python
class Asm:
    def __init__(self):
        self.lines = []
        self.uid = 0
        self.probe = False
        self.kidx = 0
        self.nst = 0
        self.tags = {}
    def stamp(self, tag=''):
        if not self.probe or getattr(self, 'mute', False): return
        i = self.nst; self.nst += 1
        assert i < 19, "too many stamps"
        self.tags.setdefault(self.part, []).append(tag)
        self.lines.append(f"    s_memtime s[{58+2*i}:{59+2*i}]")
    def part_begin(self, part):
        if getattr(self, 'nobegin', False): return
        self.part = part; self.nst = 0
        if not self.probe: return
        self.lines.append("    s_memrealtime s[56:57]")
        self.lines.append("    v_readfirstlane_b32 s101, v0")
        self.stamp('begin')
    def probe_flush(self):
        L = ["s_mov_b64 exec, -1", "s_waitcnt vmcnt(0) lgkmcnt(0)"]
        i = self.nst
        self.tags.setdefault(self.part, []).append('end')
        L += [f"s_memtime s[{58+2*i}:{59+2*i}]", "s_memrealtime s[100:101]" if False else "s_memrealtime s[98:99]", "s_mov_b32 s100, s101",
              "s_waitcnt lgkmcnt(0)", "v_mov_b32 v1, 0", "v_writelane_b32 v1, s56, 0", "v_writelane_b32 v1, s98, 1"]
        for j in range(i + 1):
            L.append(f"v_writelane_b32 v1, s{58+2*j}, {2+j}")
        L += ["s_load_dwordx2 s[96:97], s[0:1], 120", "s_waitcnt lgkmcnt(0)",
              f"s_add_u32 s96, s96, {0xD00000 + self.kidx*0x40000}", "s_addc_u32 s97, s97, 0", "s_mov_b32 s98, 0x40000", "s_mov_b32 s99, 0x00020000",
              "s_lshl_b32 s100, s100, 1", "s_lshl_b32 s101, s2, 9", "s_add_u32 s100, s100, s101",
              "v_mbcnt_lo_u32_b32 v2, -1, 0", "v_lshlrev_b32 v2, 2, v2", "v_add_u32 v2, s100, v2",
              "s_mov_b64 exec, 0xffffffff", "buffer_store_dword v1, v2, s[96:99], 0 offen", "s_waitcnt vmcnt(0)"]
        for l in L: self.lines.append('    ' + l)
    def __call__(self, s):
        for l in s.split('\n'):
            l = l.strip()
            if l == 's_endpgm' and self.probe and getattr(self, 'inpart', False):
                self.probe_flush()
            if l:
                self.lines.append(('' if l.endswith(':') else '    ') + l)
    def raw(self, s):
        self.lines.append(s)
    def label(self, base):
        self.uid += 1
        return f"{base}_{self.uid}"
    def text(self):
        return '\n'.join(self.lines) + '\n'

def kernel_begin(a, name):
    a.raw('.text')
    a.raw(f'.globl {name}')
    a.raw('.p2align 8')
    a.raw(f'.type {name},@function')
    a.raw(f'{name}:')

def kernel_desc(name, vgpr, sgpr=102, accum=None, wgy=False):
    if accum is None:
        accum = (vgpr + 3) // 4 * 4
    s = f""".p2align 6
.amdhsa_kernel {name}
  .amdhsa_next_free_vgpr {vgpr}
  .amdhsa_next_free_sgpr {sgpr}
  .amdhsa_accum_offset {accum}
  .amdhsa_group_segment_fixed_size 0
  .amdhsa_kernarg_size 128
  .amdhsa_user_sgpr_count 2
  .amdhsa_user_sgpr_kernarg_segment_ptr 1
  .amdhsa_system_sgpr_workgroup_id_x 1
"""
    if wgy:
        s += "  .amdhsa_system_sgpr_workgroup_id_y 1\n"
    s += ".end_amdhsa_kernel\n"
    return s

def srd(a, d, ptr, nbytes):
    a(f"s_mov_b32 s{d}, s{ptr}")
    a(f"s_mov_b32 s{d+1}, s{ptr+1}")
    a(f"s_mov_b32 s{d+2}, {nbytes}")
    a(f"s_mov_b32 s{d+3}, 0x00020000")
```

```python
import sys, os
sys.path.insert(0, os.path.dirname(os.path.abspath(__file__)))
from gen_common import *
from haz import fix_hazards
import importlib

HEADER = open('concat_heads__linear_kernel_hedgehog__ssm_conv_s4__prompt.s.ref').read().split('; Override launch')[0]

def build_text(which, opts=None):
    opts = opts or {}
    a = Asm()
    a.probe = opts.get('probe', '0') == '1'
    launches = []
    descs = []
    for ki, k in enumerate(which):
        a.kidx = int(k[1]) - 1
        mod = importlib.import_module('gen_' + k)
        name = f"hh_{k}_kernel"
        info = getattr(mod, 'gen_' + k)(a, name, opts)
        launches.append(f"; @launch kernel={name} grid=({info['wgs']},1,1) block=({info.get('block',256)},1,1) lds={info['lds']}")
        descs.append(kernel_desc(name, info['vgpr'], accum=info.get('accum')))
    lines, n = fix_hazards(a.lines)
    txt = HEADER + '\n'.join(launches) + '\n.amdgcn_target "amdgcn-amd-amdhsa--gfx950"\n'
    txt += '\n'.join(lines) + '\n.section .rodata,"a"\n' + ''.join(descs)
    if a.probe:
        import json; json.dump(a.tags, open('probe_tags.json', 'w'))
    return txt, n

if __name__ == '__main__':
    out = sys.argv[1]
    which = sys.argv[2].split(',')
    opts = dict(kv.split('=') for kv in sys.argv[3:])
    txt, n = build_text(which, opts)
    open(out, 'w').write(txt)
    print(f"wrote {out}: {len(txt)} bytes, {n} s_nop inserted")
```

```python
import sys, os
sys.path.insert(0, os.path.dirname(os.path.abspath(__file__)))
from gen_common import *
from haz import fix_hazards
import importlib

HEADER = open('concat_heads__linear_kernel_hedgehog__ssm_conv_s4__prompt.s.ref').read().split('; Override launch')[0]

def build_text(which, opts=None):
    opts = opts or {}
    a = Asm()
    a.probe = opts.get('probe', '0') == '1'
    launches = []
    descs = []
    for ki, k in enumerate(which):
        a.kidx = 0 if k == 'k4' else int(k[1]) - 1
        mod = importlib.import_module('gen_' + k)
        name = f"hh_{k}_kernel"
        n0 = len(a.lines)
        info = getattr(mod, 'gen_' + k)(a, name, opts)
        for i in range(n0, len(a.lines)):
            l = a.lines[i]
            if k == 'k4' or not l.strip().startswith('buffer_store') or 's[96:99]' in l: continue
            key = 'st' + k[1]
            if k == 'k1':
                key = 'st_pq' if 's[28:31]' in l else 'st_kv' if 's[32:35]' in l else 'st_ut' if 's[40:43]' in l else 'st_kr'
            elif k == 'k2':
                key = 'st_o' if ' v6, ' in l else 'st_yt'
            sfx = opts.get(key, opts.get('st' + k[1], '')).replace('+', ' ')
            if sfx: a.lines[i] += ' ' + sfx
        launches.append(f"; @launch kernel={name} grid=({info['wgs']},1,1) block=({info.get('block',256)},1,1) lds={info['lds']}")
        descs.append(kernel_desc(name, info['vgpr'], accum=info.get('accum')))
    lines, n = fix_hazards(a.lines)
    txt = HEADER + '\n'.join(launches) + '\n.amdgcn_target "amdgcn-amd-amdhsa--gfx950"\n'
    txt += '\n'.join(lines) + '\n.section .rodata,"a"\n' + ''.join(descs)
    build_text.tags = a.tags
    return txt, n

if __name__ == '__main__':
    out = sys.argv[1]
    which = sys.argv[2].split(',')
    opts = dict(kv.split('=') for kv in sys.argv[3:])
    txt, n = build_text(which, opts)
    open(out, 'w').write(txt)
    if opts.get('probe', '0') == '1':
        import json; json.dump(dict(tags=build_text.tags, opts=opts, parts=({'a2': (0, 0, 256), 'b2': (0, 256, 480)} if 'k4' in which else None)), open(out + '.tags.json', 'w'))
    print(f"wrote {out}: {len(txt)} bytes, {n} s_nop inserted")
```

```python
from asmlib import *

PQ_OFF  = 0x000000
KVP_OFF = 0x200000
O_OFF   = 0x300000
KR_OFF  = 0x500000
KR_COPY = 4160
KR_CH   = 2 * KR_COPY
UT_OFF  = 0x900000
YT_OFF  = 0xB00000
FLAG_OFF = 0xE00000

KA_X, KA_WQKV, KA_WPHI, KA_WO, KA_U = 0, 8, 16, 24, 32
KA_ARE, KA_AIM, KA_BRE, KA_BIM, KA_CRE, KA_CIM = 40, 48, 56, 64, 72, 80
KA_LOGDT, KA_DSKIP, KA_OUT, KA_DBG, KA_WS = 88, 96, 104, 112, 120

def srd_off(a, d, ptr, off, nbytes):
    a(f"s_add_u32 s{d}, s{ptr}, {off}")
    a(f"s_addc_u32 s{d+1}, s{ptr+1}, 0")
    a(f"s_mov_b32 s{d+2}, {nbytes}")
    a(f"s_mov_b32 s{d+3}, 0x00020000")

def wave_lane(a, s_w, v_lane, tmp):
    a(f"v_lshrrev_b32 v{tmp}, 6, v0")
    a(f"v_and_b32 v{v_lane}, 63, v0")
    a(f"v_readfirstlane_b32 s{s_w}, v{tmp}")

def dma(a, voff, srd, soff, ldsaddr_s=None, ldsaddr_imm=None, tmp_s=None, extra=''):
    if ldsaddr_s is None:
        a(f"s_mov_b32 m0, {ldsaddr_imm}")
    elif not ldsaddr_imm:
        a(f"s_mov_b32 m0, s{ldsaddr_s}")
    else:
        a(f"s_add_u32 m0, s{ldsaddr_s}, {ldsaddr_imm}")
    a(f"buffer_load_dwordx4 v{voff}, s[{srd}:{srd+3}], {soff} offen lds{extra}")


def signal_add(a, sflag, voff, vone):
    a("s_mov_b64 exec, 1")
    a(f"v_mov_b32 v{vone}, 1")
    a(f"v_mov_b32 v{voff}, 0")
    a(f"buffer_atomic_add v{vone}, v{voff}, s[{sflag}:{sflag+3}], 0 offen sc1")
    a("s_mov_b64 exec, -1")

def poll_wait(a, lab, sflag, voff, vtmp, count, s0, s1):
    a("s_mov_b64 exec, 1")
    a(f"v_mov_b32 v{voff}, 0")
    a(f"s_mov_b32 s{s0}, 0x100000")
    a(f"{lab}:")
    a(f"buffer_load_dword v{vtmp}, v{voff}, s[{sflag}:{sflag+3}], 0 offen sc1")
    a("s_waitcnt vmcnt(0)")
    a(f"v_readfirstlane_b32 s{s1}, v{vtmp}")
    a(f"s_cmp_ge_u32 s{s1}, {count}")
    a(f"s_cbranch_scc1 {lab}_ok")
    a(f"s_sub_u32 s{s0}, s{s0}, 1")
    a(f"s_cmp_lg_u32 s{s0}, 0")
    a(f"s_cbranch_scc1 {lab}")
    a(f"{lab}_ok:")
    a("s_mov_b64 exec, -1")
```

```python
from asmlib import *

PQ_OFF  = 0x000000
KVP_OFF = 0x200000
O_OFF   = 0x300000
KR_OFF  = 0x500000
KR_COPY = 4160
KR_CH   = 2 * KR_COPY
UT_OFF  = 0x900000
YT_OFF  = 0xB00000
FLAG_OFF = 0xE00000

KA_X, KA_WQKV, KA_WPHI, KA_WO, KA_U = 0, 8, 16, 24, 32
KA_ARE, KA_AIM, KA_BRE, KA_BIM, KA_CRE, KA_CIM = 40, 48, 56, 64, 72, 80
KA_LOGDT, KA_DSKIP, KA_OUT, KA_DBG, KA_WS = 88, 96, 104, 112, 120

def srd_off(a, d, ptr, off, nbytes):
    a(f"s_add_u32 s{d}, s{ptr}, {off}")
    a(f"s_addc_u32 s{d+1}, s{ptr+1}, 0")
    a(f"s_mov_b32 s{d+2}, {nbytes}")
    a(f"s_mov_b32 s{d+3}, 0x00020000")

def wave_lane(a, s_w, v_lane, tmp):
    a(f"v_lshrrev_b32 v{tmp}, 6, v0")
    a(f"v_and_b32 v{v_lane}, 63, v0")
    a(f"v_readfirstlane_b32 s{s_w}, v{tmp}")

def dma(a, voff, srd, soff, ldsaddr_s=None, ldsaddr_imm=None, tmp_s=None, extra=''):
    if ldsaddr_s is None:
        a(f"s_mov_b32 m0, {ldsaddr_imm}")
    elif not ldsaddr_imm:
        a(f"s_mov_b32 m0, s{ldsaddr_s}")
    else:
        a(f"s_add_u32 m0, s{ldsaddr_s}, {ldsaddr_imm}")
    a(f"buffer_load_dwordx4 v{voff}, s[{srd}:{srd+3}], {soff} offen lds{extra}")


def signal_add(a, sflag, voff, vone):
    a("s_mov_b64 exec, 1")
    a(f"v_mov_b32 v{vone}, 1")
    a(f"v_mov_b32 v{voff}, 0")
    a(f"buffer_atomic_add v{vone}, v{voff}, s[{sflag}:{sflag+3}], 0 offen sc1")
    a("s_mov_b64 exec, -1")

def poll_wait(a, lab, sflag, voff, vtmp, count, s0, s1):
    a("s_mov_b64 exec, 1")
    a(f"v_mov_b32 v{voff}, 0")
    a(f"s_mov_b32 s{s0}, 0x100000")
    a(f"{lab}:")
    a(f"buffer_load_dword v{vtmp}, v{voff}, s[{sflag}:{sflag+3}], 0 offen sc1")
    a("s_waitcnt vmcnt(0)")
    a(f"v_readfirstlane_b32 s{s1}, v{vtmp}")
    a(f"s_cmp_ge_u32 s{s1}, {count}")
    a(f"s_cbranch_scc1 {lab}_ok")
    a(f"s_sub_u32 s{s0}, s{s0}, 1")
    a(f"s_cmp_lg_u32 s{s0}, 0")
    a(f"s_cbranch_scc1 {lab}")
    a(f"{lab}_ok:")
    a("s_mov_b64 exec, -1")


def flag_srd(a, mode, sfl, ptr, s_grp, is_b, t):
    if mode in (0, 1):
        a(f"s_lshl_b32 s{t}, s{s_grp}, 7")
        a(f"s_add_u32 s{t}, s{t}, {FLAG_OFF + (16*128 if is_b else 0)}")
        srd_off(a, sfl, ptr, f"s{t}", 4 if mode == 0 else 128)
    elif mode == 2:
        a(f"s_lshl_b32 s{t}, s{s_grp}, {12 if is_b else 11}")
        a(f"s_add_u32 s{t}, s{t}, {FLAG_OFF + (32768 if is_b else 0)}")
        srd_off(a, sfl, ptr, f"s{t}", 4096 if is_b else 2048)
    else:
        a(f"s_lshl_b32 s{t}, s{s_grp}, 10")
        a(f"s_add_u32 s{t}, s{t}, {FLAG_OFF + (16*1024 if is_b else 0)}")
        srd_off(a, sfl, ptr, f"s{t}", 1024)

def flag_signal(a, mode, sfl, voff, vone, s_idx, vlane, t):
    if mode == 0: return signal_add(a, sfl, voff, vone)
    if mode == 3:
        a("s_mov_b64 exec, 0xff")
        a(f"v_mov_b32 v{vone}, 1")
        a(f"v_lshlrev_b32 v{voff}, 7, v{vlane}")
        a(f"buffer_atomic_add v{vone}, v{voff}, s[{sfl}:{sfl+3}], 0 offen sc1")
    else:
        a("s_mov_b64 exec, 1")
        a(f"s_lshl_b32 s{t}, s{s_idx}, {2 if mode == 1 else 7}")
        a(f"v_mov_b32 v{vone}, 1")
        a(f"v_mov_b32 v{voff}, s{t}")
        a(f"buffer_store_dword v{vone}, v{voff}, s[{sfl}:{sfl+3}], 0 offen sc1")
    a("s_mov_b64 exec, -1")

def flag_poll(a, mode, lab, sfl, voff, vtmp, count, s0, s1, vlane):
    if mode == 0: return poll_wait(a, lab, sfl, voff, vtmp, count, s0, s1)
    if mode == 3:
        a("s_mov_b64 exec, 1")
        a(f"s_and_b32 s{s1}, s2, 7")
        a(f"s_lshl_b32 s{s1}, s{s1}, 7")
        a(f"v_mov_b32 v{voff}, s{s1}")
    else:
        a(f"s_mov_b64 exec, {(1 << count) - 1:#x}")
        a(f"v_lshlrev_b32 v{voff}, {2 if mode == 1 else 7}, v{vlane}")
    a(f"s_mov_b32 s{s0}, 0x100000")
    a(f"{lab}:")
    a(f"buffer_load_dword v{vtmp}, v{voff}, s[{sfl}:{sfl+3}], 0 offen sc1")
    a("s_waitcnt vmcnt(0)")
    if mode == 3:
        a(f"v_readfirstlane_b32 s{s1}, v{vtmp}")
        a(f"s_cmp_ge_u32 s{s1}, {count}")
        a(f"s_cbranch_scc1 {lab}_ok")
    else:
        a(f"v_cmp_eq_u32 vcc, 0, v{vtmp}")
        a("s_nop 1")
        a(f"s_cbranch_vccz {lab}_ok")
    a(f"s_sub_u32 s{s0}, s{s0}, 1")
    a(f"s_cmp_lg_u32 s{s0}, 0")
    a(f"s_cbranch_scc1 {lab}")
    a(f"{lab}_ok:")
    a("s_mov_b64 exec, -1")
```

```python
from asmlib import *

PQ_OFF  = 0x000000
KVP_OFF = 0x200000
O_OFF   = 0x300000
KR_OFF  = 0x500000
KR_COPY = 4160
KR_CH   = 2 * KR_COPY
UT_OFF  = 0x900000
YT_OFF  = 0xB00000
FLAG_OFF = 0xE00000

KA_X, KA_WQKV, KA_WPHI, KA_WO, KA_U = 0, 8, 16, 24, 32
KA_ARE, KA_AIM, KA_BRE, KA_BIM, KA_CRE, KA_CIM = 40, 48, 56, 64, 72, 80
KA_LOGDT, KA_DSKIP, KA_OUT, KA_DBG, KA_WS = 88, 96, 104, 112, 120

def srd_off(a, d, ptr, off, nbytes):
    a(f"s_add_u32 s{d}, s{ptr}, {off}")
    a(f"s_addc_u32 s{d+1}, s{ptr+1}, 0")
    a(f"s_mov_b32 s{d+2}, {nbytes}")
    a(f"s_mov_b32 s{d+3}, 0x00020000")

def wave_lane(a, s_w, v_lane, tmp):
    a(f"v_lshrrev_b32 v{tmp}, 6, v0")
    a(f"v_and_b32 v{v_lane}, 63, v0")
    a(f"v_readfirstlane_b32 s{s_w}, v{tmp}")

def dma(a, voff, srd, soff, ldsaddr_s=None, ldsaddr_imm=None, tmp_s=None, extra=''):
    if ldsaddr_s is None:
        a(f"s_mov_b32 m0, {ldsaddr_imm}")
    elif not ldsaddr_imm:
        a(f"s_mov_b32 m0, s{ldsaddr_s}")
    else:
        a(f"s_add_u32 m0, s{ldsaddr_s}, {ldsaddr_imm}")
    a(f"buffer_load_dwordx4 v{voff}, s[{srd}:{srd+3}], {soff} offen lds{extra}")


def signal_add(a, sflag, voff, vone):
    a("s_mov_b64 exec, 1")
    a(f"v_mov_b32 v{vone}, 1")
    a(f"v_mov_b32 v{voff}, 0")
    a(f"buffer_atomic_add v{vone}, v{voff}, s[{sflag}:{sflag+3}], 0 offen sc1")
    a("s_mov_b64 exec, -1")

def poll_wait(a, lab, sflag, voff, vtmp, count, s0, s1):
    a("s_mov_b64 exec, 1")
    a(f"v_mov_b32 v{voff}, 0")
    a(f"s_mov_b32 s{s0}, 0x100000")
    a(f"{lab}:")
    a(f"buffer_load_dword v{vtmp}, v{voff}, s[{sflag}:{sflag+3}], 0 offen sc1")
    a("s_waitcnt vmcnt(0)")
    a(f"v_readfirstlane_b32 s{s1}, v{vtmp}")
    a(f"s_cmp_ge_u32 s{s1}, {count}")
    a(f"s_cbranch_scc1 {lab}_ok")
    a(f"s_sub_u32 s{s0}, s{s0}, 1")
    a(f"s_cmp_lg_u32 s{s0}, 0")
    a(f"s_cbranch_scc1 {lab}")
    a(f"{lab}_ok:")
    a("s_mov_b64 exec, -1")


def flag_srd(a, mode, sfl, ptr, s_grp, is_b, t):
    if mode in (0, 1):
        a(f"s_lshl_b32 s{t}, s{s_grp}, 7")
        a(f"s_add_u32 s{t}, s{t}, {FLAG_OFF + (16*128 if is_b else 0)}")
        srd_off(a, sfl, ptr, f"s{t}", 4 if mode == 0 else 128)
    elif mode == 2:
        a(f"s_lshl_b32 s{t}, s{s_grp}, {12 if is_b else 11}")
        a(f"s_add_u32 s{t}, s{t}, {FLAG_OFF + (32768 if is_b else 0)}")
        srd_off(a, sfl, ptr, f"s{t}", 4096 if is_b else 2048)
    else:
        a(f"s_lshl_b32 s{t}, s{s_grp}, 10")
        a(f"s_add_u32 s{t}, s{t}, {FLAG_OFF + (16*1024 if is_b else 0)}")
        srd_off(a, sfl, ptr, f"s{t}", 1024)

def flag_signal(a, mode, sfl, voff, vone, s_idx, vlane, t):
    if mode == 0: return signal_add(a, sfl, voff, vone)
    if mode == 3:
        a("s_mov_b64 exec, 0xff")
        a(f"v_mov_b32 v{vone}, 1")
        a(f"v_lshlrev_b32 v{voff}, 7, v{vlane}")
        a(f"buffer_atomic_add v{vone}, v{voff}, s[{sfl}:{sfl+3}], 0 offen sc1")
    else:
        a("s_mov_b64 exec, 1")
        a(f"s_lshl_b32 s{t}, s{s_idx}, {2 if mode == 1 else 7}")
        a(f"v_mov_b32 v{vone}, 1")
        a(f"v_mov_b32 v{voff}, s{t}")
        a(f"buffer_store_dword v{vone}, v{voff}, s[{sfl}:{sfl+3}], 0 offen sc1")
    a("s_mov_b64 exec, -1")

def flag_poll(a, mode, lab, sfl, voff, vtmp, count, s0, s1, vlane):
    if mode == 0: return poll_wait(a, lab, sfl, voff, vtmp, count, s0, s1)
    if mode == 3:
        a("s_mov_b64 exec, 1")
        a(f"s_and_b32 s{s1}, s2, 7")
        a(f"s_lshl_b32 s{s1}, s{s1}, 7")
        a(f"v_mov_b32 v{voff}, s{s1}")
    else:
        a(f"s_mov_b64 exec, {(1 << count) - 1:#x}")
        a(f"v_lshlrev_b32 v{voff}, {2 if mode == 1 else 7}, v{vlane}")
    a(f"s_mov_b32 s{s0}, 0x100000")
    a(f"{lab}:")
    a(f"buffer_load_dword v{vtmp}, v{voff}, s[{sfl}:{sfl+3}], 0 offen sc1")
    a("s_waitcnt vmcnt(0)")
    if mode == 3:
        a(f"v_readfirstlane_b32 s{s1}, v{vtmp}")
        a(f"s_cmp_ge_u32 s{s1}, {count}")
        a(f"s_cbranch_scc1 {lab}_ok")
    else:
        a(f"v_cmp_eq_u32 vcc, 0, v{vtmp}")
        a("s_nop 1")
        a(f"s_cbranch_vccz {lab}_ok")
    a(f"s_sub_u32 s{s0}, s{s0}, 1")
    a(f"s_cmp_lg_u32 s{s0}, 0")
    a(f"s_cbranch_scc1 {lab}")
    a(f"{lab}_ok:")
    a("s_mov_b64 exec, -1")


KVF_OFF = FLAG_OFF + 32768
UTF_OFF = FLAG_OFF + 49152
SDBG = 54

def grp_srd(a, d, ptr, s_grp, base, t):
    a(f"s_lshl_b32 s{t}, s{s_grp}, 10")
    a(f"s_add_u32 s{t}, s{t}, {base}")
    srd_off(a, d, ptr, f"s{t}", 1024)

def phase_end(a, lab, SW, LANE, ptr, s_grp, base, sf, sd, t0, t1, v0_, v1_):
    a("s_mov_b64 exec, -1")
    grp_srd(a, sf, ptr, s_grp, base, t0)
    a(f"s_mov_b32 s{sd}, s{SDBG}")
    a(f"s_mov_b32 s{sd+1}, s{SDBG+1}")
    a(f"s_mov_b32 s{sd+2}, 4")
    a(f"s_mov_b32 s{sd+3}, 0x00020000")
    a(f"v_mov_b32 v{v0_}, 0")
    a(f"s_cmp_eq_u32 s{SW}, 0")
    a(f"s_cbranch_scc0 {lab}_nold")
    a("s_mov_b64 exec, 1")
    a(f"buffer_load_dword v{v1_}, v{v0_}, s[{sd}:{sd+3}], 0 offen sc1")
    a("s_mov_b64 exec, -1")
    a(f"{lab}_nold:")
    a("s_waitcnt vmcnt(0) lgkmcnt(0)")
    a("s_barrier")
    a(f"s_cmp_eq_u32 s{SW}, 0")
    a(f"s_cbranch_scc0 {lab}_nosig")
    a(f"v_readfirstlane_b32 s{t1}, v{v1_}")
    a(f"s_cmp_lg_u32 s{t1}, 0")
    a(f"s_cbranch_scc1 {lab}_rdy")
    poll_wait(a, f"{lab}_init", sd, v0_, v1_, 1, t0, t1)
    a(f"{lab}_rdy:")
    flag_signal(a, 3, sf, v0_, v1_, None, LANE, t0)
    a(f"{lab}_nosig:")

def phase_poll(a, lab, SW, LANE, ptr, s_grp, base, count, sf, t0, t1, v0_, v1_):
    grp_srd(a, sf, ptr, s_grp, base, t0)
    a(f"s_cmp_eq_u32 s{SW}, 0")
    a(f"s_cbranch_scc0 {lab}_no")
    flag_poll(a, 3, lab, sf, v0_, v1_, count, t0, t1, LANE)
    a(f"{lab}_no:")
    a("s_barrier")
```
